```python
import torch

def _softmax(x, axis=-1):
    return torch.softmax(x, dim=axis)
def _gelu(x):
    return torch.nn.functional.gelu(x, approximate="tanh")
def _silu(x):
    return torch.nn.functional.silu(x)
def _sigmoid(x):
    return torch.sigmoid(x)
def _layernorm(x, axis=-1, eps=1e-5):
    m = x.mean(dim=axis, keepdim=True)
    v = x.var(dim=axis, keepdim=True, unbiased=False)
    return (x - m) / torch.sqrt(v + eps)
def _scatter_add(tgt, idx, src, axis=0):
    return tgt.clone().index_add_(axis, idx, src)
def _segment_sum(src, seg, n):
    out = torch.zeros((n,) + src.shape[1:], dtype=src.dtype)
    return out.index_add_(0, seg, src)
def _pad(x, pw):
    flat = tuple(v for pair in reversed(pw) for v in pair)
    return torch.nn.functional.pad(x, flat)

kernel_name = 'gated_mix__grouped_kv_mqa__mixer_token_mlp__prompt'

def setup_inputs():

    _w = (lambda a: (lambda t: t.to(torch.bfloat16) if t.is_floating_point() else t)(torch.as_tensor(a)))
    def _A_setup():
        B, S, D, H = 1, 2048, 512, 32
        Dh = D // H
        return {
            "x": _w((lambda *s: torch.randn(*s, dtype=torch.bfloat16) * 0.05)(B, S, D)),
            "wq": _w((lambda *s: torch.randn(*s, dtype=torch.bfloat16) * 0.8)(D, H * Dh)),
            "wk": _w((lambda *s: torch.randn(*s, dtype=torch.bfloat16) * 0.8)(D, Dh)),
            "wv": _w((lambda *s: torch.randn(*s, dtype=torch.bfloat16) * 0.05)(D, Dh)),
            "wo": _w((lambda *s: torch.randn(*s, dtype=torch.bfloat16) * 0.05)(H * Dh, D)),
        }
    _A_in = _A_setup()

    def _B_setup():
        B, S, D, F = 1, 2048, 512, 1792
        return {
            "x": _w((lambda *s: torch.randn(*s, dtype=torch.bfloat16) * 0.05)(B, S, D)),
            "w1": _w((lambda *s: torch.randn(*s, dtype=torch.bfloat16) * 0.2)(S, F) * (S ** -0.5)),
            "b1": _w((lambda *s: torch.randn(*s, dtype=torch.bfloat16) * 1.6)(F) * 0.02),
            "w2": _w((lambda *s: torch.randn(*s, dtype=torch.bfloat16) * 0.05)(F, S) * (F ** -0.5)),
            "b2": _w((lambda *s: torch.randn(*s, dtype=torch.bfloat16) * 0.1)(S) * 0.02),
        }
    _B_in = _B_setup()

    return {
        "A_x": _A_in["x"],
        "A_wq": _A_in["wq"],
        "A_wk": _A_in["wk"],
        "A_wv": _A_in["wv"],
        "A_wo": _A_in["wo"],
        "B_x": _B_in["x"],
        "B_w1": _B_in["w1"],
        "B_b1": _B_in["b1"],
        "B_w2": _B_in["w2"],
        "B_b2": _B_in["b2"],
        "gate_w": _w((lambda *s: torch.randn(*s, dtype=torch.bfloat16) * 0.05)(512) * 16.0),
    }

def reference(A_x, A_wq, A_wk, A_wv, A_wo, B_x, B_w1, B_b1, B_w2, B_b2, gate_w):
    def _A_ref(x, wq, wk, wv, wo):
        B, S, D = x.shape
        H = 32
        Dh = D // H
        q = (lambda x, *d: x.permute(*d))((x @ wq).reshape(B, S, H, Dh), 0, 2, 1, 3)
        k = x @ wk
        v = x @ wv
        scores = torch.einsum("bhqd,bkd->bhqk", q, k) * (Dh ** -0.5)
        p = _softmax(scores, axis=-1)
        o = torch.einsum("bhqk,bkd->bhqd", p, v)
        return (lambda x, *d: x.permute(*d))(o, 0, 2, 1, 3).reshape(B, S, H * Dh) @ wo

    def _B_ref(x, w1, b1, w2, b2):
        B, S, D = x.shape
        h = _layernorm(x, axis=-1)
        u = torch.einsum("bsd,sf->bdf", h, w1) + b1
        u = _gelu(u)
        y = torch.einsum("bdf,fs->bds", u, w2) + b2
        return (lambda x, *d: x.permute(*d))(y, 0, 2, 1)

    x = A_x
    g = _sigmoid((x * gate_w).sum(-1, keepdims=True))
    a = _A_ref(x, A_wq, A_wk, A_wv, A_wo)
    b = _B_ref(x, B_w1, B_b1, B_w2, B_b2)
    return g * a + (1 - g) * b
```

```python
import re


class Asm:
    def __init__(self):
        self.lines = []
        self.uid = 0

    def __call__(self, s):
        for ln in s.split("\n"):
            ln = ln.rstrip()
            if ln.strip():
                self.lines.append(ln if ln.strip().endswith(":") else "    " + ln.strip())

    def label(self, name):
        self.lines.append(name + ":")

    def new(self, base):
        self.uid += 1
        return f"L_{base}_{self.uid}"

    def text(self):
        return "\n".join(self.lines) + "\n"


def vr(base, n=1):
    return f"v{base}" if n == 1 else f"v[{base}:{base+n-1}]"


def sr(base, n=1):
    return f"s{base}" if n == 1 else f"s[{base}:{base+n-1}]"


_REG = re.compile(r"^(-?)(?:abs\()?([vsa])(?:(\d+)|\[(\d+):(\d+)\])\)?$")


def regs_of(op):
    op = op.strip()
    if op in ("vcc", "exec", "m0"):
        return {op}
    if op in ("vcc_lo", "vcc_hi"):
        return {"vcc"}
    if op in ("exec_lo", "exec_hi"):
        return {"exec"}
    m = _REG.match(op)
    if not m:
        return set()
    k = m.group(2)
    if m.group(3) is not None:
        return {k + m.group(3)}
    return {k + str(i) for i in range(int(m.group(4)), int(m.group(5)) + 1)}


TRANS = ("v_exp_", "v_log_", "v_rcp_", "v_rsq_", "v_sqrt_", "v_sin_", "v_cos_")


def parse(ln):
    s = ln.split(";")[0].strip()
    if not s or s.endswith(":") or s.startswith("."):
        return None
    parts = s.split(None, 1)
    mn = parts[0]
    rest = parts[1] if len(parts) > 1 else ""
    ops, cur, depth = [], "", 0
    for ch in rest:
        if ch == "[":
            depth += 1
        if ch == "]":
            depth -= 1
        if ch == "," and depth == 0:
            ops.append(cur.strip())
            cur = ""
        else:
            cur += ch
    if cur.strip():
        ops.append(cur.strip())
    mods = ""
    if ops:
        last = ops[-1].split(None, 1)
        ops[-1] = last[0]
        if len(last) > 1:
            mods = last[1]
    d = dict(mn=mn, ops=ops, mods=mods, defs=set(), uses=set(), kind="other", line=ln)
    R = [regs_of(o) for o in ops]
    if mn.startswith("v_mfma") or mn.startswith("v_smfmac"):
        d["kind"] = "mfma"
        d["passes"] = 8 if "32x32" in mn else 4
        d["defs"] = R[0]
        d["ab"] = R[1] | R[2]
        if mn.startswith("v_smfmac"):
            d["ab"] |= R[3]
            d["c"] = R[0]
        else:
            d["c"] = R[3]
        d["uses"] = d["ab"] | d["c"]
    elif mn.startswith("v_"):
        d["kind"] = "valu"
        if mn.startswith("v_cmp"):
            d["defs"] = R[0]
            d["uses"] = set().union(*R[1:])
        elif mn.startswith("v_permlane") and "swap" in mn:
            d["defs"] = R[0] | R[1]
            d["uses"] = R[0] | R[1]
        elif mn.startswith("v_add_co") or mn.startswith("v_addc_co") or mn.startswith("v_sub_co"):
            d["defs"] = R[0] | R[1]
            d["uses"] = set().union(*R[2:])
        else:
            d["defs"] = R[0]
            d["uses"] = set().union(*R[1:]) if len(R) > 1 else set()
            if mn.startswith("v_fmac") or mn.startswith("v_writelane") or "dpp" in mn or "sdwa" in mn:
                d["uses"] |= R[0]
        d["trans"] = mn.startswith(TRANS)
    elif mn.startswith("ds_"):
        d["kind"] = "ds"
        if mn.startswith("ds_read"):
            d["defs"] = R[0]
            d["uses"] = set().union(*R[1:])
        else:
            d["uses"] = set().union(*R)
    elif mn.startswith("buffer_") or mn.startswith("global_"):
        d["kind"] = "vmem"
        lds = " lds" in (" " + mods) or "load_lds" in mn
        d["lds"] = lds
        if "load" in mn and not lds:
            d["defs"] = R[0]
            d["uses"] = set().union(*R[1:])
        else:
            d["uses"] = set().union(*R) if R else set()
        if "store" in mn and ("x4" in mn or "x3" in mn):
            d["wdata"] = R[0] if mn.startswith("buffer_") else R[1]
    elif mn.startswith("s_"):
        d["kind"] = "salu"
        if mn.startswith(("s_cmp", "s_cbranch", "s_branch", "s_waitcnt", "s_nop", "s_sleep", "s_setprio", "s_barrier", "s_endpgm", "s_setpc")):
            d["uses"] = set().union(*R) if R else set()
        else:
            d["defs"] = R[0] if R else set()
            d["uses"] = set().union(*R[1:]) if len(R) > 1 else set()
    return d


def states(d):
    if d["mn"] == "s_nop":
        return int(d["ops"][0]) + 1
    return 1


def check(lines):
    ins = []
    errs = []
    for n, ln in enumerate(lines):
        d = parse(ln)
        if d is None:
            continue
        d["n"] = n
        dist = 0
        for p in reversed(ins):
            if dist >= 20:
                break
            need = 0
            why = ""
            vdefs = {r for r in p["defs"] if r[0] in "va" and r != "vcc"}
            sdefs = {r for r in p["defs"] if r[0] == "s" or r == "vcc"}
            if p["kind"] == "valu":
                if d["kind"] == "mfma" and vdefs & d["uses"]:
                    need, why = 2, "valu->mfma"
                if d["kind"] == "valu":
                    if p.get("trans") and not d.get("trans") and vdefs & d["uses"]:
                        need, why = max(need, 1), "trans->valu"
                    if d["mn"].startswith(("v_readfirstlane", "v_readlane")) and vdefs & d["uses"]:
                        need, why = max(need, 1), "valu->readlane"
                    if d["mn"].startswith("v_permlane") and vdefs & d["uses"]:
                        need, why = max(need, 2), "valu->permlane"
                    if "dpp" in d["mn"] and vdefs & d["uses"]:
                        need, why = max(need, 2), "valu->dpp"
                    if sdefs & d["uses"]:
                        need, why = max(need, 2), "valu sgpr->valu"
                    if "vcc" in p["defs"] and d["mn"].startswith("v_cndmask"):
                        need, why = max(need, 2), "vcc->cndmask"
                if d["kind"] == "vmem" and sdefs & d["uses"]:
                    need, why = max(need, 5), "valu sgpr->vmem"
                if p.get("trans") and d["kind"] in ("ds", "vmem") and vdefs & d["uses"]:
                    need, why = max(need, 1), "trans->mem"
            if p["kind"] == "mfma":
                P = p["passes"]
                big = {4: 8, 8: 12}[P]
                if d["kind"] == "mfma":
                    if p["defs"] & d["ab"]:
                        need, why = big, "mfma->mfma AB"
                    elif p["defs"] & d["c"]:
                        if not (p["defs"] == d["c"] and d["passes"] == P):
                            need, why = {4: 6, 8: 10}[P], "mfma->mfma C overlap"
                elif d["kind"] in ("valu", "ds", "vmem"):
                    if p["defs"] & (d["uses"] | d["defs"]):
                        need, why = big, "mfma->use"
                    elif d["kind"] == "valu" and p["c"] & d["defs"]:
                        need, why = {4: 3, 8: 7}[P], "mfma C WAR"
            if p["kind"] == "vmem" and p.get("wdata") and p["wdata"] & d["defs"]:
                need, why = max(need, 2), "store data WAR"
            if p["kind"] == "salu" and "m0" in p["defs"] and d["kind"] == "vmem" and d.get("lds"):
                need, why = max(need, 1), "m0->dma"
            if need > dist:
                errs.append(f"HAZARD {why}: need {need} have {dist}\n   {p['n']}: {p['line'].strip()}\n   {d['n']}: {d['line'].strip()}")
            dist += states(p)
        ins.append(d)
        if d["mn"] in ("s_branch", "s_endpgm", "s_setpc_b64"):
            ins = []
    return errs
```

```python
import sys, math, struct
from asmlib import Asm, vr, sr, check

NAME = "gated_mix__grouped_kv_mqa__mixer_token_mlp__prompt"
OPT = dict(stamps=0, D=8, DA=4, svc=4, lo=-60, hi=80)
for a_ in sys.argv[2:]:
    k_, v_ = a_.split("=")
    OPT[k_] = int(v_)


def f2u(x):
    return struct.unpack("<I", struct.pack("<f", x))[0]


KVF, HF, UF = 0x1000, 0x8000, 0x18000
KF, VF = 0x30000, 0x40000
HT, UU, OO = 0x100000, 0x300000, 0x500000
DBG = 0x1000000
WS_SIZE = 0x10000000
RING = 28672
KVS = 114688
QF = 114688
OP = 122880
MISC = 155648
M_GP, M_AP, M_FD, M_KVD, M_G, M_GATE, M_MAX = MISC, MISC + 16, MISC + 32, MISC + 64, MISC + 256, MISC + 512, MISC + 2560
LDS_SIZE = 163840
X, WQ, WK, WV, WO, W1, B1, W2, B2, GW, OUT, WS = 4, 8, 12, 16, 20, 24, 28, 32, 36, 40, 44, 48
sTag, sRb, sCb, sSg, sFb, sDb, sHas, sJ = 52, 53, 54, 55, 56, 57, 58, 59
sBud, sRing, sFin = 60, 61, 62
sRet = 64
sAct, sW, sT0, sT1, sT2, sT3, sW2, sWo = 66, 67, 68, 69, 70, 71, 72, 73
sC0 = 74
sK0 = 80
sSt = 84

a = Asm()
S4 = lambda b: sr(b, 4)
nstamp = [0]


def stamp(i, cyc=False):
    if OPT["stamps"]:
        a(f"{'s_memtime' if cyc else 's_memrealtime'} {sr(sSt+2*i,2)}")


def dump_stamps():
    if not OPT["stamps"]:
        return
    a("s_waitcnt lgkmcnt(0)")
    for i in range(8):
        a(f"v_mov_b32 v{40+i}, s{sSt+2*i}")
    a(f"""s_lshl_b32 s{sT0}, s2, 3
    s_add_u32 s{sT0}, s{sT0}, s3
    s_lshl_b32 s{sT0}, s{sT0}, 6
    s_add_u32 s{sT0}, s{sT0}, {DBG}
    v_mov_b32 v39, 0
    s_mov_b64 exec, 1
    buffer_store_dwordx4 v[40:43], v39, {S4(WS)}, s{sT0} offen
    buffer_store_dwordx4 v[44:47], v39, {S4(WS)}, s{sT0} offen offset:16
    s_mov_b64 exec, -1""")


def lds_wait(vaddr, vtmp, thresh, off=0, service=False, sleep=1):
    L, E = a.new("lw"), a.new("lwe")
    a.label(L)
    a(f"""ds_read_b32 v{vtmp}, v{vaddr} offset:{off}
    s_waitcnt lgkmcnt(0)
    v_cmp_le_u32 vcc, {thresh}, v{vtmp}
    s_cmp_eq_u64 vcc, -1
    s_cbranch_scc1 {E}
    s_sub_u32 s{sBud}, s{sBud}, 1
    s_cbranch_scc1 L_bail""")
    if service:
        svc()
    a(f"""s_sleep {sleep}
    s_branch {L}""")
    a.label(E)


def glb_wait(vaddr, vtmp, soff, service=False, sleep=1):
    L, E = a.new("gw"), a.new("gwe")
    a.label(L)
    a(f"""buffer_load_dword v{vtmp}, v{vaddr}, {S4(WS)}, {soff} offen sc1
    s_waitcnt vmcnt(0)
    v_cmp_eq_u32 vcc, s{sTag}, v{vtmp}
    s_cmp_eq_u64 vcc, -1
    s_cbranch_scc1 {E}
    s_sub_u32 s{sBud}, s{sBud}, 1
    s_cbranch_scc1 L_bail""")
    if service:
        svc()
    a(f"""s_sleep {sleep}
    s_branch {L}""")
    a.label(E)


def flag_store(vzero, vtag, soff):
    a(f"""s_mov_b64 exec, 1
    buffer_store_dword v{vtag}, v{vzero}, {S4(WS)}, {soff} offen sc1
    s_mov_b64 exec, -1""")


def svc():
    E = a.new("sv")
    a(f"""s_cmp_ge_u32 s{sFin}, 8
    s_cbranch_scc1 {E}
    s_call_b64 {sr(sRet,2)}, L_service""")
    a.label(E)


class VQ:
    def __init__(self):
        self.q = []

    def add(self, tag):
        self.q.append(tag)

    def wait(self, *tags):
        last = -1
        for i, t in enumerate(self.q):
            if t in tags:
                last = i
        if last < 0:
            return
        n = len(self.q) - 1 - last
        assert n <= 60, n
        a(f"s_waitcnt vmcnt({n})")
        self.q = self.q[last + 1:]

    def drain(self):
        self.q = []


def finalize(A0, B0, L0, R0, vP, vL, vG, vLane16, vTagT, sOoff, check_range):
    for w in range(4):
        a(f"ds_read_b32 v{L0+w}, v{vL} offset:{w*2560}")
    for w in range(4):
        a(f"ds_read_b128 {vr(A0+4*w,4)}, v{vP} offset:{w*2560}")
    for w in range(4):
        a(f"ds_read_b128 {vr(B0+4*w,4)}, v{vP} offset:{w*2560+1024}")
    a("s_waitcnt lgkmcnt(8)")
    a(f"""v_pk_add_f32 {vr(L0,2)}, {vr(L0,2)}, {vr(L0+2,2)}
    v_add_f32 v{L0}, v{L0}, v{L0+1}
    v_rcp_f32 v{L0+1}, v{L0}""")
    if check_range:
        a(f"""v_cmp_le_f32 vcc, {hex(f2u(2.0**OPT['lo']))}, v{L0}
        s_mov_b64 {sr(sT2,2)}, vcc
        v_cmp_ge_f32 vcc, {hex(f2u(2.0**OPT['hi']))}, v{L0}
        s_and_b64 {sr(sT2,2)}, {sr(sT2,2)}, vcc""")
    else:
        a("s_nop 0")
    a(f"v_mul_f32 v{L0+2}, v{L0+1}, v{vG}")
    a("s_waitcnt lgkmcnt(0)")
    if check_range:
        a(f"""s_cmp_eq_u64 {sr(sT2,2)}, -1
        s_cselect_b32 s{sT1}, 1, 2
        s_lshl_b32 s{sT0}, s{sFin}, 2
        s_add_u32 s{sT0}, s{sT0}, {M_FD}
        v_mov_b32 v{L0}, s{sT0}
        v_mov_b32 v{L0+1}, s{sT1}
        ds_write_b32 v{L0}, v{L0+1}
        s_cmp_eq_u32 s{sT1}, 2
        s_cbranch_scc1 L_fin_skip""")
    for base in (A0, B0):
        for h in (0, 2):
            a(f"v_pk_add_f32 {vr(base+h,2)}, {vr(base+h,2)}, {vr(base+4+h,2)}")
            a(f"v_pk_add_f32 {vr(base+8+h,2)}, {vr(base+8+h,2)}, {vr(base+12+h,2)}")
        for h in (0, 2):
            a(f"v_pk_add_f32 {vr(base+h,2)}, {vr(base+h,2)}, {vr(base+8+h,2)}")
        for h in (0, 2):
            a(f"v_pk_mul_f32 {vr(base+h,2)}, {vr(base+h,2)}, {vr(L0+2,2)} op_sel_hi:[1,0]")
    a(f"""v_mov_b32 v{R0}, s{sTag}
    v_mov_b32 v{R0+6}, s{sTag}
    v_cvt_pk_bf16_f32 v{R0+2}, v{A0}, v{A0+1}
    v_cvt_pk_bf16_f32 v{R0+3}, v{A0+2}, v{A0+3}
    v_cvt_pk_bf16_f32 v{R0+4}, v{B0}, v{B0+1}
    v_cvt_pk_bf16_f32 v{R0+5}, v{B0+2}, v{B0+3}
    buffer_store_dwordx4 {vr(R0,4)}, v{vLane16}, {S4(WS)}, s{sOoff} offen sc1
    buffer_store_dwordx4 {vr(R0+4,4)}, v{vLane16}, {S4(WS)}, s{sOoff} offen offset:1024 sc1""")


def o_offset(sq, sdst, stmp):
    a(f"""s_lshr_b32 s{sdst}, s{sq}, 2
    s_lshl_b32 s{stmp}, s{sRb}, 1
    s_add_u32 s{sdst}, s{sdst}, s{stmp}
    s_lshl_b32 s{sdst}, s{sdst}, 3
    s_add_u32 s{sdst}, s{sdst}, s{sCb}
    s_lshl_b32 s{sdst}, s{sdst}, 2
    s_and_b32 s{stmp}, s{sq}, 3
    s_add_u32 s{sdst}, s{sdst}, s{stmp}
    s_lshl_b32 s{sdst}, s{sdst}, 11
    s_add_u32 s{sdst}, s{sdst}, {OO}""")


def entry():
    a(f"""s_cmp_ge_u32 s2, 256
    s_cbranch_scc1 L_end
    s_load_dwordx2 {sr(X,2)}, s[0:1], 0
    s_load_dwordx2 {sr(WS,2)}, s[0:1], 104
    s_load_dwordx2 {sr(WK,2)}, s[0:1], 16
    s_load_dwordx2 {sr(WV,2)}, s[0:1], 24
    s_load_dwordx2 {sr(WQ,2)}, s[0:1], 8
    s_load_dwordx16 s[64:79], s[0:1], 32""")
    stamp(0)
    a(f"s_getpc_b64 s[62:63]")
    a.label("L_pc")
    a(f"""v_lshlrev_b32 v1, 7, v0
    v_min_u32 v1, L_codeend-L_pc-4, v1
    global_load_dword v63, v1, s[62:63]
    v_lshrrev_b32 v3, 6, v0
    v_and_b32 v0, 63, v0
    v_readfirstlane_b32 s3, v3
    v_lshlrev_b32 v4, 2, v0
    v_add_u32 v4, {MISC}, v4
    v_mov_b32 v5, 0
    s_cmp_lg_u32 s3, 0
    s_cbranch_scc1 L_noinit
    ds_write_b32 v4, v5""")
    a.label("L_noinit")
    sizes = {X: 2097152, WQ: 524288, WK: 16384, WV: 16384, WO: 524288, W1: 7340032, B1: 3584, W2: 7340032,
             B2: 4096, GW: 1024, OUT: 2097152, WS: WS_SIZE}
    for b, sz in sizes.items():
        a(f"s_mov_b32 s{b+2}, {sz}\ns_mov_b32 s{b+3}, 0x00020000")
    a(f"""s_and_b32 s{sDb}, s2, 7
    s_lshr_b32 s{sHas}, s2, 3
    s_lshl_b32 s{sRb}, s{sDb}, 2
    s_and_b32 s{sCb}, s{sHas}, 3
    s_add_u32 s{sRb}, s{sRb}, s{sCb}
    s_lshr_b32 s{sCb}, s{sHas}, 2
    s_lshl_b32 s{sSg}, s{sRb}, 3
    s_add_u32 s{sSg}, s{sSg}, s{sCb}
    s_mul_i32 s{sDb}, s{sDb}, 28
    s_add_u32 s{sDb}, s{sDb}, s{sHas}
    s_lshr_b32 s{sFb}, s{sDb}, 3
    s_and_b32 s{sDb}, s{sDb}, 7
    s_and_b32 s{sJ}, s3, 3
    s_mov_b32 s{sBud}, 0x40000
    s_cmp_ge_u32 s3, 4
    s_cbranch_scc1 L_gemm""")


def get_tag():
    a(f"""s_mul_i32 s{sTag}, s{sTag}, 0x9E3779B1
    s_add_u32 s{sTag}, s{sTag}, 0x7F4A7C15""")


vIdx, vL16, vPw, vLw, vFl, vT6, vVo = 1, 2, 3, 4, 5, 6, 7
Q0, O0, S0, K0, V0 = 8, 16, 32, 64, 128


def qk(t, buf):
    a(f"v_mfma_f32_32x32x16_bf16 {vr(S0+16*buf,16)}, {vr(K0+4*t,4)}, {vr(Q0,4)}, 0")


def pv(t, e, buf):
    a(f"v_smfmac_f32_32x32x32_bf16 {vr(O0,16)}, {vr(V0+8*t+4*e,4)}, {vr(S0+16*buf+8*e,8)}, v{vIdx}")


def attention():
    a("s_setprio 1")
    sLB = sRing
    a(f"""s_mul_i32 s{sLB}, s{sJ}, 10240
    s_add_u32 s{sLB}, s{sLB}, {KVS}
    v_lshrrev_b32 v10, 4, v0
    v_and_b32 v11, 15, v0
    v_lshlrev_b32 v12, 2, v10
    v_xor_b32 v12, v12, v11
    v_lshlrev_b32 v12, 4, v12
    v_lshl_add_u32 v12, v10, 10, v12
    v_lshlrev_b32 v{vL16}, 4, v0
    s_lshl_b32 s{sK0}, s{sSg}, 13
    s_lshl_b32 s{sK0+1}, s{sJ}, 8
    s_add_u32 s{sK0}, s{sK0}, s{sK0+1}
    s_add_u32 s{sK0+1}, s{sK0}, 4096
    s_lshl_b32 s{sK0+2}, s{sJ}, 12
    s_mov_b32 m0, s{sLB}
    s_waitcnt lgkmcnt(0)
    s_barrier
    s_load_dword s{sTag}, {sr(WS,2)}, 0
    buffer_load_dwordx4 v12, {S4(X)}, s{sK0} offen lds
    s_add_u32 m0, s{sLB}, 1024
    s_nop 0
    buffer_load_dwordx4 v12, {S4(X)}, s{sK0+1} offen lds
    s_add_u32 m0, s{sLB}, 2048
    s_nop 0""")
    for i in range(4):
        a(f"buffer_load_dwordx4 v{vL16}, {S4(WK)}, s{sK0+2} offen offset:{1024*i} lds")
    a(f"s_add_u32 m0, s{sLB}, 6144\ns_nop 0")
    for i in range(4):
        a(f"buffer_load_dwordx4 v{vL16}, {S4(WV)}, s{sK0+2} offen offset:{1024*i} lds")
    a(f"""v_and_b32 v13, 7, v0
    v_lshlrev_b32 v13, 8, v13
    v_lshl_add_u32 v13, v10, 4, v13
    v_and_b32 v14, 3, v0
    v_lshl_add_u32 v13, v14, 6, v13
    v_add_u32 v13, s{sLB}, v13
    v_xor_b32 v14, 64, v13
    v_xor_b32 v15, 128, v13
    v_xor_b32 v16, 192, v13
    v_lshlrev_b32 v17, 8, v10
    v_lshl_add_u32 v17, v11, 3, v17
    v_add_u32 v17, s{sLB}, v17
    v_add_u32 v18, s{sLB}, v{vL16}
    s_lshl_b32 s{sT0}, s{sJ}, 2
    s_add_u32 s{sT0}, s{sT0}, {M_AP}
    v_mov_b32 v19, s{sT0}
    v_and_b32 v20, 3, v0
    v_lshlrev_b32 v20, 2, v20
    v_add_u32 v20, {MISC}, v20""")
    a(f"""v_and_b32 v21, 11, v0
    v_cmp_eq_u32 vcc, 0, v21
    v_mov_b32 v21, 0x3f803f80
    v_mov_b32 v{vIdx}, 0xdddddddd
    v_cndmask_b32 v21, 0, v21, vcc""")
    for t in range(16):
        for r in range(4):
            a(f"v_mov_b32 v{V0+8*t+4+r}, v21")
    a(f"""v_and_b32 v22, 31, v0
    v_and_b32 v23, 1, v0
    v_lshrrev_b32 v24, 1, v22
    v_lshl_add_u32 v25, v23, 4, v24
    v_lshlrev_b32 v25, 4, v25
    v_add_u32 v25, 1024, v25
    v_lshrrev_b32 v26, 4, v22
    v_lshl_add_u32 v27, v23, 1, v26
    v_and_b32 v24, 7, v24
    v_lshl_add_u32 v27, v27, 4, v24
    v_lshlrev_b32 v27, 4, v27
    v_cmp_gt_u32 vcc, 32, v0
    s_lshl_b32 s{sT0}, s{sSg}, 8
    s_add_u32 s{sT0}, s{sT0}, {VF}
    v_cndmask_b32 v25, v27, v25, vcc
    v_add_u32 v25, {KVS}, v25
    v_lshlrev_b32 v28, 3, v22
    v_add_u32 v28, s{sT0}, v28
    s_lshr_b32 s{sT0}, s{sSg}, 2
    s_lshl_b32 s{sT0}, s{sT0}, 10
    s_and_b32 s{sT1}, s{sSg}, 3
    s_lshl_b32 s{sT1}, s{sT1}, 7
    s_add_u32 s{sT0}, s{sT0}, s{sT1}
    s_add_u32 s{sT0}, s{sT0}, {KF}
    v_lshlrev_b32 v29, 3, v11
    v_lshl_add_u32 v29, v26, 9, v29
    v_add_u32 v29, s{sT0}, v29
    v_cndmask_b32 v28, v29, v28, vcc""")
    a("s_waitcnt vmcnt(0)")
    stamp(1)
    XF, WF = 64, 80
    for t in range(4):
        a(f"ds_read_b128 {vr(XF+4*t,4)}, v{13+t}")
        for m in range(2):
            for q in range(2):
                a(f"ds_read_b64_tr_b16 {vr(WF+16*m+4*t+2*q,2)}, v17 offset:{2048+4096*m+1024*t+128*q}")
        if t == 1:
            a("s_waitcnt lgkmcnt(0)")
            get_tag()
    for t in range(4):
        if t == 2:
            a("s_waitcnt lgkmcnt(0)")
        c0 = "0" if t == 0 else "v[32:35]"
        c1 = "0" if t == 0 else "v[36:39]"
        a(f"v_mfma_f32_16x16x32_bf16 v[32:35], {vr(WF+4*t,4)}, {vr(XF+4*t,4)}, {c0}")
        a(f"v_mfma_f32_16x16x32_bf16 v[36:39], {vr(XF+4*t,4)}, {vr(WF+16+4*t,4)}, {c1}")
    a(f"""v_mov_b32 v30, 1
    s_nop 6
    ds_write_b128 v18, v[32:35]
    ds_write_b128 v18, v[36:39] offset:1024
    ds_write_b32 v19, v30
    s_cmp_lg_u32 s{sJ}, 0
    s_cbranch_scc1 L_kv_done""")
    lds_wait(20, 31, 1, off=16, sleep=0)
    for w in range(4):
        a(f"ds_read_b128 {vr(40+4*w,4)}, v25 offset:{10240*w}")
    a(f"""v_mov_b32 v31, s{sTag}
    s_lshl_b32 s{sT0}, s{sSg}, 6
    s_add_u32 s{sT0}, s{sT0}, {KVF}
    s_waitcnt lgkmcnt(0)
    v_pk_add_f32 v[40:41], v[40:41], v[44:45]
    v_pk_add_f32 v[42:43], v[42:43], v[46:47]
    v_pk_add_f32 v[48:49], v[48:49], v[52:53]
    v_pk_add_f32 v[50:51], v[50:51], v[54:55]
    v_pk_add_f32 v[40:41], v[40:41], v[48:49]
    v_pk_add_f32 v[42:43], v[42:43], v[50:51]
    v_cvt_pk_bf16_f32 v40, v40, v41
    v_cvt_pk_bf16_f32 v41, v42, v43
    buffer_store_dwordx2 v[40:41], v28, {S4(WS)}, 0 offen sc1
    v_mov_b32 v42, 0
    v_mov_b32 v43, 0
    v_lshlrev_b32 v44, 3, v0
    v_add_u32 v44, {OP+2048}, v44""")
    for i in range(8):
        a(f"ds_write_b64 v44, v[42:43] offset:{2560*i}")
    a(f"""v_mov_b32 v44, {M_KVD}
    ds_write_b32 v44, v30
    s_waitcnt vmcnt(0)""")
    flag_store(42, 31, f"s{sT0}")
    a.label("L_kv_done")
    stamp(2)
    a(f"""s_mul_i32 s{sT0}, s{sJ}, 2560
    s_add_u32 s{sT0}, s{sT0}, {OP}
    v_add_u32 v{vPw}, s{sT0}, v{vL16}
    v_lshlrev_b32 v{vLw}, 3, v0
    v_add_u32 v{vLw}, s{sT0}, v{vLw}
    v_mov_b32 v{vFl}, {MISC}
    v_and_b32 v10, 15, v0
    v_lshlrev_b32 v10, 4, v10
    v_bfe_u32 v11, v0, 4, 1
    v_lshl_add_u32 v10, v11, 9, v10
    v_lshrrev_b32 v11, 5, v0
    v_lshl_add_u32 v10, v11, 8, v10
    v_add_u32 v{vVo}, {VF-KF}, v10
    v_lshlrev_b32 v12, 6, v0
    v_mov_b32 v13, v20
    v_add_u32 v14, {QF}, v{vL16}
    s_lshl_b32 s{sT0}, s{sJ}, 12
    s_add_u32 s{sT0}, s{sT0}, {KVF}
    s_lshl_b32 s{sK0}, s{sJ}, 14
    s_add_u32 s{sK0}, s{sK0}, {KF}
    s_add_u32 s{sK0+1}, s{sK0}, 4096
    s_add_u32 s{sK0+2}, s{sK0}, 8192
    s_add_u32 s{sK0+3}, s{sK0}, 12288""")
    for r in range(0, 16, 2):
        a(f"v_mov_b64 {vr(O0+r,2)}, 0")
    vQa = 14
    glb_wait(12, 15, f"s{sT0}", sleep=1)
    stamp(3)
    vq = VQ()

    def kvload(t):
        a(f"buffer_load_dwordx4 {vr(K0+4*t,4)}, v{vL16}, {S4(WS)}, s{sK0+t//4} offen offset:{(t%4)*1024} sc1")
        vq.add(("K", t))
        a(f"buffer_load_dwordx4 {vr(V0+8*t,4)}, v{vVo}, {S4(WS)}, s{sK0+t//4} offen offset:{(t%4)*1024} sc1")
        vq.add(("V", t))
    DA = OPT["DA"]
    for t in range(DA):
        kvload(t)
    lds_wait(13, 15, 4, sleep=1)
    a(f"ds_read_b128 {vr(Q0,4)}, v{vQa}")
    vq.wait(("K", 0))
    a("s_waitcnt lgkmcnt(0)")
    stamp(4)
    stamp(6, cyc=True)
    qk(0, 0)
    a("s_nop 11")
    tails = []
    for p in range(8):
        for t in range(16):
            buf = t % 2
            first = (p == 0 and t == 0)
            last = (p == 7 and t == 15)
            for i in range(16):
                a(f"v_exp_f32 v{S0+16*buf+i}, v{S0+16*buf+i}")
                if i == 1 and not first:
                    pv((t - 1) % 16, 1, 1 - buf)
                if i == 4:
                    if p == 0:
                        vq.wait(("K", t + 1) if t < 15 else ("V", 15))
                    if t == 15 and not last:
                        a("s_waitcnt lgkmcnt(0)")
                    if not last:
                        qk((t + 1) % 16, 1 - buf)
                    if t == 14:
                        if p < 7:
                            a(f"ds_read_b128 {vr(Q0,4)}, v{vQa} offset:{(p+1)*1024}")
                        if p >= 2:
                            a(f"ds_read_b32 v{vT6}, v{vFl} offset:{M_FD-MISC+4*(p-2)}")
                    if p == 0:
                        for r in range(4):
                            a(f"v_permlane16_swap_b32 v{V0+8*t+r}, v{V0+8*t+4+r}")
                        if t + DA < 16:
                            kvload(t + DA)
                if i == 12 and t == 0 and p > 0:
                    put_partial(p - 1, tails)
                    for r in range(0, 8, 2):
                        a(f"v_mov_b64 {vr(O0+r,2)}, 0")
                    a(f"v_mov_b32 v{O0+8}, 0")
                if i == 14:
                    pv(t, 0, buf)
    a("s_nop 1")
    pv(15, 1, 1)
    a("s_waitcnt lgkmcnt(0)\ns_nop 10")
    put_partial(7, tails)
    stamp(5)
    stamp(7, cyc=True)
    slow_path(vQa)
    a.label("L_att_end")
    dump_stamps()
    a("s_endpgm")
    for (L, B, p) in tails:
        a.label(L)
        lds_wait(vFl, vT6, 1, off=M_FD - MISC + 4 * (p - 2), sleep=1)
        a(f"s_branch {B}")


def put_partial(p, tails):
    if p >= 2:
        L, B = a.new("war"), a.new("warb")
        a(f"""v_cmp_eq_u32 vcc, 0, v{vT6}
        s_cbranch_vccnz {L}""")
        a.label(B)
        tails.append((L, B, p))
    off = (p % 2) * 10240
    a(f"""v_mov_b32 v{O0+9}, {p+1}
    ds_write_b128 v{vPw}, {vr(O0,4)} offset:{off}
    ds_write_b128 v{vPw}, {vr(O0+4,4)} offset:{off+1024}
    ds_write_b64 v{vLw}, {vr(O0+8,2)} offset:{off+2048}""")


def slow_path(vQa):
    sMask, sQ, sPh = sK0, sK0 + 1, sK0 + 2
    a(f"""s_setprio 0
    v_and_b32 v12, 7, v0
    v_lshlrev_b32 v12, 2, v12
    v_add_u32 v12, {M_FD}, v12""")
    lds_wait(12, vT6, 1, sleep=2)
    a(f"""v_cmp_eq_u32 vcc, 2, v{vT6}
    s_and_b32 s{sMask}, vcc_lo, 0xff
    s_cbranch_scc0 L_att_end
    s_mov_b32 s{sPh}, 1
    s_lshl_b32 s{sT0}, s{sJ}, 2
    s_add_u32 s{sT0}, s{sT0}, {M_AP}
    v_mov_b32 v12, s{sT0}""")

    def sync():
        a(f"""s_add_u32 s{sPh}, s{sPh}, 1
        v_mov_b32 v{vT6}, s{sPh}
        ds_write_b32 v12, v{vT6}""")
        lds_wait(13, vT6, f"s{sPh}", off=16, sleep=1)
    a.label("L_slow_loop")
    a(f"""s_ff1_i32_b32 s{sQ}, s{sMask}
    s_bitset0_b32 s{sMask}, s{sQ}
    s_lshl_b32 s{sT0}, s{sQ}, 10
    v_add_u32 v15, s{sT0}, v{vQa}
    ds_read_b128 {vr(Q0,4)}, v15
    v_mov_b32 v{S0+16}, 0xff800000
    s_waitcnt lgkmcnt(0)""")
    M = S0 + 16
    for t in range(16):
        qk(t, 0)
        a("s_nop 11")
        for i in range(0, 16, 2):
            a(f"v_max3_f32 v{M}, v{M}, v{S0+i}, v{S0+i+1}")
    a(f"""v_mov_b32 v{M+1}, v{M}
    s_nop 1
    v_permlane32_swap_b32 v{M}, v{M+1}
    v_max_f32 v{M}, v{M}, v{M+1}
    s_lshl_b32 s{sT0}, s{sJ}, 8
    s_add_u32 s{sT0}, s{sT0}, {M_MAX}
    v_lshlrev_b32 v{M+2}, 2, v0
    v_add_u32 v{M+3}, s{sT0}, v{M+2}
    v_add_u32 v{M+2}, {M_MAX}, v{M+2}
    ds_write_b32 v{M+3}, v{M}""")
    sync()
    for w in range(4):
        a(f"ds_read_b32 v{M+4+w}, v{M+2} offset:{256*w}")
    for r in range(0, 16, 2):
        a(f"v_mov_b64 {vr(O0+r,2)}, 0")
    a(f"""s_waitcnt lgkmcnt(0)
    v_max3_f32 v{M}, v{M+4}, v{M+5}, v{M+6}
    v_max_f32 v{M}, v{M}, v{M+7}""")
    for t in range(16):
        qk(t, 0)
        a("s_nop 11")
        for i in range(16):
            a(f"v_sub_f32 v{S0+i}, v{S0+i}, v{M}")
        for i in range(16):
            a(f"v_exp_f32 v{S0+i}, v{S0+i}")
        a("s_nop 1")
        pv(t, 0, 0)
        pv(t, 1, 0)
    a(f"""s_nop 11
    ds_write_b128 v{vPw}, {vr(O0,4)}
    ds_write_b128 v{vPw}, {vr(O0+4,4)} offset:1024
    ds_write_b64 v{vLw}, {vr(O0+8,2)} offset:2048""")
    sync()
    a(f"""s_cmp_lg_u32 s{sJ}, 0
    s_cbranch_scc1 L_slow_nofin
    s_lshr_b32 s{sT0}, s{sQ}, 2
    s_lshl_b32 s{sT0}, s{sT0}, 7
    s_add_u32 s{sT0}, s{sT0}, {M_G}
    v_and_b32 v15, 31, v0
    v_lshlrev_b32 v15, 2, v15
    v_add_u32 v15, s{sT0}, v15
    ds_read_b32 v15, v15
    v_add_u32 v{O0+14}, 2048, v{vLw}""")
    o_offset(sQ, sT0, sT1)
    a("s_waitcnt lgkmcnt(0)")
    finalize(S0, S0 + 16, O0, O0 + 4, vPw, O0 + 14, 15, vL16, None, sT0, False)
    a.label("L_slow_nofin")
    sync()
    a(f"""s_cmp_lg_u32 s{sMask}, 0
    s_cbranch_scc1 L_slow_loop""")


gTrA, gTrB, gL16, gD1, gAct, gPoll, gPh, gPhW, gTagA, gPr, gLr, gRed, gL16h = 1, 3, 5, 6, 8, 9, 10, 11, 12, 13, 14, 15, 16
gZero, gG, gOm, gAdd, gD2, gDq, gTagV, gT, gGf = 17, 18, 20, 22, 24, 26, 28, 29, 31
ACC, ACT, WFR, TMP = 32, 96, 160, 176
RES = 240


def dma_pattern(dst, pitch):
    a(f"""s_mov_b32 s{sT0}, {pitch}
    v_mul_lo_u32 v{dst}, v29, s{sT0}
    v_add_u32 v{dst}, v{dst}, v30
    v_add_u32 v{dst+1}, {8*pitch-1024}, v{dst}""")


def dma_step(vq, tag, srd, vpat, soff, slot, stride):
    a(f"""s_add_u32 m0, s{sRing}, {slot*2048}
    s_nop 0
    buffer_load_dwordx4 v{vpat}, {S4(srd)}, s{soff} offen lds
    buffer_load_dwordx4 v{vpat+1}, {S4(srd)}, s{soff} offen offset:1024 lds""")
    if stride:
        a(f"s_add_u32 s{soff}, s{soff}, {stride}")
    vq.add(tag)
    vq.add(tag)


def tr_reads(dst, vtr, off, qstep):
    for c in range(2):
        for q in range(2):
            a(f"ds_read_b64_tr_b16 {vr(dst+4*c+2*q,2)}, v{vtr+c} offset:{off+q*qstep}")


def mfma32(acc, A_, B_, zero=False):
    a(f"v_mfma_f32_32x32x16_bf16 {vr(acc,16)}, {vr(A_,4)}, {vr(B_,4)}, {'0' if zero else vr(acc,16)}")


def set_phase(val):
    a(f"""v_mov_b32 v{gT}, {val}
    ds_write_b32 v{gPhW}, v{gT}""")


def reduce4(boff, ph, between=None, service=False):
    E = a.new("rw")
    labels = [a.new("rwj") for _ in range(4)]
    for j in range(1, 4):
        a(f"s_cmp_eq_u32 s{sJ}, {j}\ns_cbranch_scc1 {labels[j]}")
    for j in range(4):
        a.label(labels[j])
        for q in range(4):
            if q == j:
                continue
            idx = (q - j - 1) % 4
            for i in range(4):
                a(f"ds_write_b128 v{gRed}, {vr(ACC+16*q+4*i,4)} offset:{boff+idx*4096+i*1024}")
        if j < 3:
            a(f"s_branch {E}")
    a.label(E)
    set_phase(ph)
    if between:
        between()
    lds_wait(gPh, gT, ph, service=service, sleep=0)
    E = a.new("rr")
    labels = [a.new("rrj") for _ in range(4)]
    for j in range(1, 4):
        a(f"s_cmp_eq_u32 s{sJ}, {j}\ns_cbranch_scc1 {labels[j]}")
    for j in range(4):
        a.label(labels[j])
        k = 0
        for w in range(4):
            if w == j:
                continue
            idx = (j - w - 1) % 4
            for i in range(4):
                off = w * RING + boff + idx * 4096 + i * 1024
                base = gL16 if off < 65536 else gL16h
                a(f"ds_read_b128 {vr(ACT+16*k+4*i,4)}, v{base} offset:{off%65536}")
            k += 1
        a("s_waitcnt lgkmcnt(8)")
        for r in range(0, 16, 2):
            a(f"v_pk_add_f32 {vr(RES+r,2)}, {vr(ACC+16*j+r,2)}, {vr(ACT+r,2)}")
        if j < 3:
            a(f"s_branch {E}")
    a.label(E)
    a("s_waitcnt lgkmcnt(4)")
    for r in range(0, 16, 2):
        a(f"v_pk_add_f32 {vr(RES+r,2)}, {vr(RES+r,2)}, {vr(ACT+16+r,2)}")
    a("s_waitcnt lgkmcnt(0)")
    for r in range(0, 16, 2):
        a(f"v_pk_add_f32 {vr(RES+r,2)}, {vr(RES+r,2)}, {vr(ACT+32+r,2)}")


def reduce32(v, t):
    for sh in (8, 4, 2, 1):
        a(f"s_nop 1\nv_add_f32_dpp v{v}, v{v}, v{v} row_ror:{sh} row_mask:0xf bank_mask:0xf")
    a(f"""v_mov_b32 v{t}, v{v}
    s_nop 1
    v_permlane16_swap_b32 v{v}, v{t}
    v_add_f32 v{v}, v{v}, v{t}""")


def o_poll(frags, dst, sbase):
    L, E = a.new("op"), a.new("ope")
    n = len(frags)
    a(f"s_mul_i32 s{sC0+5}, s{sTag}, {2*n}")
    a.label(L)
    for i, off in enumerate(frags):
        a(f"""s_add_u32 s{sT0}, s{sbase}, {off}
        buffer_load_dwordx4 {vr(dst+8*i,4)}, v{gL16}, {S4(WS)}, s{sT0} offen sc1
        buffer_load_dwordx4 {vr(dst+8*i+4,4)}, v{gL16}, {S4(WS)}, s{sT0} offen offset:1024 sc1""")
    for i in range(n):
        a(f"s_waitcnt vmcnt({2*(n-1-i)})")
        if i == 0:
            a(f"v_add_u32 v{gT}, v{dst}, v{dst+6}")
        else:
            a(f"v_add3_u32 v{gT}, v{dst+8*i}, v{dst+8*i+6}, v{gT}")
    a(f"""v_cmp_eq_u32 vcc, s{sC0+5}, v{gT}
    s_cmp_eq_u64 vcc, -1
    s_cbranch_scc1 {E}
    s_sub_u32 s{sBud}, s{sBud}, 1
    s_cbranch_scc1 L_bail""")
    svc()
    a(f"""s_sleep 2
    s_branch {L}""")
    a.label(E)


def gemm():
    a.label("L_gemm")
    vq = VQ()
    XR, F0 = 96, 104
    a(f"""s_mul_i32 s{sRing}, s{sJ}, {RING}
    v_and_b32 v28, 31, v0
    v_lshrrev_b32 v27, 5, v0
    v_lshlrev_b32 v26, 4, v28
    v_lshl_add_u32 v25, v27, 10, v26
    s_lshl_b32 s{sK0}, s{sSg}, 13
    s_lshl_b32 s{sK0+1}, s{sJ}, 11
    s_add_u32 s{sK0}, s{sK0}, s{sK0+1}
    v_lshl_add_u32 v{gAct}, v27, 13, v26
    v_lshlrev_b32 v{gL16}, 4, v0
    v_lshrrev_b32 v29, 3, v0
    v_and_b32 v30, 7, v0
    v_bfe_u32 v24, v0, 4, 1
    v_lshlrev_b32 v24, 2, v24
    v_xor_b32 v30, v30, v24
    v_lshlrev_b32 v30, 4, v30
    v_lshl_add_u32 v{gDq}, v29, 10, v30
    v_lshrrev_b32 v23, 4, v0
    v_and_b32 v22, 3, v0
    v_xor_b32 v22, v22, v23
    v_lshlrev_b32 v22, 4, v22
    v_lshrrev_b32 v23, 2, v0
    v_lshl_add_u32 v22, v23, 10, v22
    v_lshlrev_b32 v21, 2, v0
    s_waitcnt lgkmcnt(0)
    s_barrier
    s_load_dword s{sTag}, {sr(WS,2)}, 0
    buffer_load_dwordx4 {vr(XR,4)}, v25, {S4(X)}, s{sK0} offen
    buffer_load_dwordx4 {vr(XR+4,4)}, v25, {S4(X)}, s{sK0} offen offset:512
    s_mov_b64 {sr(WO,2)}, s[64:65]
    s_mov_b64 {sr(W1,2)}, s[68:69]
    s_mov_b64 {sr(B1,2)}, s[70:71]
    s_mov_b64 {sr(W2,2)}, s[72:73]
    s_mov_b64 {sr(B2,2)}, s[74:75]
    s_mov_b64 {sr(GW,2)}, s[76:77]
    s_mov_b64 {sr(OUT,2)}, s[78:79]""")
    vq.add("pf"); vq.add("ln"); vq.add("ln")
    a(f"""v_add_u32 v{gDq+1}, {8*1024-1024}, v{gDq}
    s_lshl_b32 s{sW}, s{sJ}, 17
    s_lshl_b32 s{sT0}, s{sCb}, 7
    s_add_u32 s{sW}, s{sW}, s{sT0}
    s_mov_b32 s{sWo}, s{sW}
    s_lshl_b32 s{sAct}, s{sRb}, 16
    s_lshl_b32 s{sT0}, s{sJ}, 8
    s_add_u32 s{sAct}, s{sAct}, s{sT0}
    s_add_u32 m0, s{sRing}, 26624
    s_nop 0
    buffer_load_dword v21, {S4(GW)}, s{sT0} offen lds""")
    vq.add("gate")

    def q_dma(u):
        ds = (u % 3) * 4
        dma_step(vq, ("q", u), WQ, gDq, sW, ds, 16384)
        dma_step(vq, ("q", u), WQ, gDq, sW, ds + 1, 16384)
        for i in range(4):
            a(f"""s_add_u32 m0, s{sRing}, {ds*2048+4096+i*1024}
            s_add_u32 s{sT0}, s{sAct}, {i*16384+u*64}
            buffer_load_dwordx4 v22, {S4(X)}, s{sT0} offen lds""")
            vq.add(("q", u))
    for u in range(3):
        q_dma(u)
    a("s_setprio 2")
    dma_pattern(gD1, 3584)
    a(f"v_mov_b32 v120, v25")
    dma_pattern(gD2, 4096)
    a(f"""v_bfe_u32 v29, v0, 2, 2
    v_lshrrev_b32 v30, 5, v0
    v_lshrrev_b32 v31, 1, v29
    v_lshlrev_b32 v31, 6, v31
    v_lshl_add_u32 v31, v29, 7, v31
    v_bfe_u32 v29, v0, 4, 1
    v_lshl_add_u32 v31, v29, 5, v31
    v_and_b32 v29, 3, v0
    v_lshl_add_u32 v31, v29, 3, v31
    v_add_u32 v31, s{sRing}, v31
    v_lshl_add_u32 v{gTrA}, v30, 10, v31
    v_xor_b32 v{gTrA+1}, 64, v{gTrA}
    v_lshl_add_u32 v{gTrB}, v30, 9, v31
    v_xor_b32 v{gTrB+1}, 64, v{gTrB}
    v_lshlrev_b32 v{gPh}, 2, v29
    v_add_u32 v{gPh}, {M_GP}, v{gPh}
    s_lshl_b32 s{sT0}, s{sJ}, 2
    s_add_u32 s{sT0}, s{sT0}, {M_GP}
    v_mov_b32 v{gPhW}, s{sT0}
    s_and_b32 s{sT0}, s{sJ}, 1
    s_mul_i32 s{sT0}, s{sT0}, 10240
    s_add_u32 s{sT0}, s{sT0}, {OP}
    v_add_u32 v{gPr}, s{sT0}, v{gL16}
    s_add_u32 s{sT0}, s{sT0}, 2048
    v_lshlrev_b32 v{gLr}, 3, v0
    v_add_u32 v{gLr}, s{sT0}, v{gLr}
    s_add_u32 s{sT0}, s{sT0}, 508
    v_mul_u32_u24 v{gTagA}, 2560, v29
    v_add_u32 v{gTagA}, s{sT0}, v{gTagA}
    v_add_u32 v{gRed}, s{sRing}, v{gL16}
    v_add_u32 v{gL16h}, 0x10000, v{gL16}
    v_mov_b32 v{gZero}, 0
    s_mov_b32 s{sFin}, 8""")
    a(f"""s_add_u32 s{sT0}, s{sRing}, 24576
    v_add_u32 v120, s{sT0}, v120
    v_bfe_u32 v29, v0, 3, 1
    v_mul_u32_u24 v121, {RING}, v29
    v_bfe_u32 v29, v0, 2, 1
    v_lshl_add_u32 v121, v29, 10, v121
    v_lshrrev_b32 v29, 4, v0
    v_lshl_add_u32 v121, v29, 5, v121
    v_and_b32 v29, 3, v0
    v_lshl_add_u32 v121, v29, 3, v121
    s_lshl_b32 s{sT0}, s{sJ}, 8
    s_add_u32 s{sT0}, s{sT0}, 24576
    v_add_u32 v121, s{sT0}, v121
    v_bfe_u32 v29, v0, 2, 2
    v_xor_b32 v29, v29, v30
    v_lshlrev_b32 v29, 4, v29
    v_and_b32 v31, 31, v0
    v_lshl_add_u32 v122, v31, 6, v29
    s_add_u32 s{sT0}, s{sRing}, 4096
    v_add_u32 v122, s{sT0}, v122
    v_xor_b32 v123, 32, v122
    s_add_u32 s{sT0}, s{sRing}, 26624
    v_lshlrev_b32 v124, 4, v30
    v_add_u32 v124, s{sT0}, v124
    s_mov_b32 s{sC0}, {hex(f2u(-1.0/512))}
    s_mov_b32 s{sC0+1}, {hex(f2u(1.0/512))}""")
    vq.wait("ln")
    stamp(1)
    for i in range(8):
        a(f"v_lshlrev_b32 v{F0+2*i}, 16, v{XR+i}\nv_and_b32 v{F0+2*i+1}, 0xffff0000, v{XR+i}")
    T = 126
    a(f"""v_pk_add_f32 v[126:127], {vr(F0,2)}, {vr(F0+2,2)}
    v_pk_add_f32 v[128:129], {vr(F0+4,2)}, {vr(F0+6,2)}
    v_pk_add_f32 v[130:131], {vr(F0+8,2)}, {vr(F0+10,2)}
    v_pk_add_f32 v[132:133], {vr(F0+12,2)}, {vr(F0+14,2)}
    v_pk_add_f32 v[126:127], v[126:127], v[128:129]
    v_pk_add_f32 v[130:131], v[130:131], v[132:133]
    v_pk_add_f32 v[126:127], v[126:127], v[130:131]
    v_add_f32 v126, v126, v127""")
    reduce32(126, 127)
    a(f"v_mul_f32 v126, s{sC0}, v126")
    for r in range(0, 16, 2):
        a(f"v_pk_add_f32 {vr(F0+r,2)}, {vr(F0+r,2)}, v[126:127] op_sel_hi:[1,0]")
    a(f"v_pk_mul_f32 v[128:129], {vr(F0,2)}, {vr(F0,2)}")
    a(f"v_pk_mul_f32 v[130:131], {vr(F0+2,2)}, {vr(F0+2,2)}")
    for r in range(4, 16, 2):
        d = 128 + 2 * ((r // 2) % 2)
        a(f"v_pk_fma_f32 {vr(d,2)}, {vr(F0+r,2)}, {vr(F0+r,2)}, {vr(d,2)}")
    a(f"""v_pk_add_f32 v[128:129], v[128:129], v[130:131]
    v_add_f32 v128, v128, v129""")
    reduce32(128, 129)
    a(f"""v_mov_b32 v129, {hex(f2u(1e-5))}
    v_fmac_f32 v129, s{sC0+1}, v128
    v_rsq_f32 v128, v129
    s_nop 0""")
    for r in range(0, 16, 2):
        a(f"v_pk_mul_f32 {vr(F0+r,2)}, {vr(F0+r,2)}, v[128:129] op_sel_hi:[1,0]")
    for i in range(8):
        a(f"v_cvt_pk_bf16_f32 v{XR+i}, v{F0+2*i}, v{F0+2*i+1}")
    a(f"""ds_write_b128 v120, {vr(XR,4)}
    ds_write_b128 v120, {vr(XR+4,4)} offset:512
    s_waitcnt lgkmcnt(0)""")
    get_tag()
    set_phase(1)
    a(f"""s_lshl_b32 s{sT1}, s{sSg}, 13
    s_lshl_b32 s{sT0}, s{sJ}, 11
    s_add_u32 s{sT1}, s{sT1}, s{sT0}
    s_add_u32 s{sT1}, s{sT1}, {HT}
    v_mov_b32 v{gTagV}, s{sTag}""")
    lds_wait(gPh, gT, 1, sleep=0)
    for i in range(2):
        for q in range(2):
            a(f"ds_read_b64_tr_b16 {vr(XR+4*i+2*q,2)}, v121 offset:{q*2*RING+i*128}")
    a(f"""s_waitcnt lgkmcnt(2)
    buffer_store_dwordx4 {vr(XR,4)}, v{gL16}, {S4(WS)}, s{sT1} offen sc1
    s_waitcnt lgkmcnt(0)
    buffer_store_dwordx4 {vr(XR+4,4)}, v{gL16}, {S4(WS)}, s{sT1} offen offset:1024 sc1""")
    vq.add("h"); vq.add("h")
    GA = TMP
    QX, QG = 128, 144

    def q_reads(t):
        u, tt = t // 2, t % 2
        ds = (u % 3) * 8192
        tr_reads(WFR + 8 * (t % 2), gTrA, ds + tt * 2048, 512)
        for b in range(2):
            a(f"ds_read_b128 {vr(QX+8*(t%2)+4*b,4)}, v{122+tt} offset:{ds+b*2048}")
        a(f"ds_read_b128 {vr(QG+4*(t%2),4)}, v124 offset:{t*32}")
    vq.wait(("q", 0))
    q_reads(0)
    for t in range(8):
        if t + 1 < 8:
            if (t + 1) % 2 == 0:
                if t + 1 == 6:
                    vq.wait("h")
                    a(f"""s_lshl_b32 s{sT0}, s{sJ}, 14
                    s_lshl_b32 s{sT1}, s{sSg}, 6
                    s_add_u32 s{sT0}, s{sT0}, s{sT1}
                    s_add_u32 s{sT0}, s{sT0}, {HF}""")
                    flag_store(gZero, gTagV, f"s{sT0}")
                    vq.add("hf")
                    stamp(2)
                vq.wait(("q", (t + 1) // 2))
            q_reads(t + 1)
            a("s_waitcnt lgkmcnt(7)")
        else:
            a("s_waitcnt lgkmcnt(0)")
        w, x, g = WFR + 8 * (t % 2), QX + 8 * (t % 2), QG + 4 * (t % 2)
        for b in range(2):
            for aa in range(2):
                mfma32(ACC + 16 * (aa + 2 * b), w + 4 * aa, x + 4 * b, t == 0)
            mfma32(GA + 16 * b, g, x + 4 * b, t == 0)
        if t == 1:
            q_dma(3)
    a(f"""s_mul_i32 s{sW}, s{sJ}, {512*3584}
    s_lshl_b32 s{sT0}, s{sFb}, 7
    s_add_u32 s{sW}, s{sW}, s{sT0}
    s_mul_i32 s{sW2}, s{sJ}, {448*4096}
    s_lshl_b32 s{sT0}, s{sRb}, 7
    s_add_u32 s{sW2}, s{sW2}, s{sT0}""")
    slot1 = lambda t: (t + 10) % 14

    def w1_at(t):
        a(f"s_add_u32 s{sT1}, s{sW}, {t*16*3584}")
        dma_step(vq, ("w", t), W1, gD1, sT1, slot1(t), 0)

    def if_has(fn):
        E = a.new("nh")
        a(f"s_cmp_ge_u32 s{sHas}, 28\ns_cbranch_scc1 {E}")
        fn()
        a.label(E)
    a(f"""s_lshl_b32 s{sT0}, s{sJ}, 9
    s_add_u32 s{sT0}, s{sT0}, {M_GATE}
    v_lshlrev_b32 v125, 3, v0
    v_add_u32 v124, s{sT0}, v125
    v_add_u32 v125, {M_GATE}, v125
    s_nop 6
    v_mov_b32 v{GA+1}, v{GA+16}
    ds_write_b64 v124, {vr(GA,2)}
    v_mov_b32 v{GA+2}, v125""")
    reduce4(8192, 3, between=lambda: if_has(lambda: [w1_at(t) for t in (0, 1, 4, 5, 6, 7)]))
    for w in range(4):
        a(f"ds_read_b64 {vr(GA+4+2*w,2)}, v{GA+2} offset:{512*w}")
    a(f"""s_mov_b32 s{sC0}, {hex(f2u(0.25*math.log2(math.e)))}
    v_mov_b32 v{GA+3}, {M_KVD}""")
    for r in range(0, 16, 2):
        a(f"v_pk_mul_f32 {vr(RES+r,2)}, {vr(RES+r,2)}, {sr(sC0,2)} op_sel_hi:[1,0]")
    for i in range(8):
        a(f"v_cvt_pk_bf16_f32 v{RES+i}, v{RES+2*i}, v{RES+2*i+1}")
    a(f"""s_lshl_b32 s{sT0}, s{sJ}, 11
    s_add_u32 s{sT0}, s{sT0}, {QF}
    v_add_u32 v{GA+2}, s{sT0}, v{gL16}""")
    lds_wait(GA + 3, gT, 1, sleep=0)
    a(f"""ds_write_b128 v{GA+2}, {vr(RES,4)}
    ds_write_b128 v{GA+2}, {vr(RES+4,4)} offset:1024
    v_pk_add_f32 {vr(GA+4,2)}, {vr(GA+4,2)}, {vr(GA+6,2)}
    v_pk_add_f32 {vr(GA+8,2)}, {vr(GA+8,2)}, {vr(GA+10,2)}
    v_pk_add_f32 {vr(GA+4,2)}, {vr(GA+4,2)}, {vr(GA+8,2)}
    v_mul_f32 v{GA+4}, {hex(f2u(-math.log2(math.e)))}, v{GA+4}
    v_mul_f32 v{GA+5}, {hex(f2u(-math.log2(math.e)))}, v{GA+5}
    v_exp_f32 v{GA+4}, v{GA+4}
    v_exp_f32 v{GA+5}, v{GA+5}
    v_and_b32 v{GA+6}, 31, v0
    v_add_f32 v{GA+4}, 1.0, v{GA+4}
    v_add_f32 v{GA+5}, 1.0, v{GA+5}
    v_rcp_f32 v{gG}, v{GA+4}
    v_rcp_f32 v{gG+1}, v{GA+5}
    v_lshlrev_b32 v{GA+7}, 2, v{GA+6}
    v_add_u32 v{GA+7}, {M_G}, v{GA+7}
    v_sub_f32 v{gOm}, 1.0, v{gG}
    v_sub_f32 v{gOm+1}, 1.0, v{gG+1}
    ds_write_b32 v{GA+7}, v{gG}
    ds_write_b32 v{GA+7}, v{gG+1} offset:128""")
    set_phase(4)
    stamp(3)
    a(f"""s_add_u32 s{sFin}, s{sJ}, 4
    v_mov_b32 v{gGf}, v{gG+1}
    s_cmp_lt_u32 s{sJ}, 2
    s_cbranch_scc1 L_duty
    s_sub_u32 s{sFin}, s{sJ}, 2
    v_mov_b32 v{gGf}, v{gG}""")
    a.label("L_duty")
    a(f"""s_lshl_b32 s{sT0}, s{sRb}, 7
    v_lshlrev_b32 v{GA+6}, 1, v{GA+6}
    buffer_load_ushort v{gAdd}, v{GA+6}, {S4(B2)}, s{sT0} offen
    buffer_load_ushort v{gAdd+1}, v{GA+6}, {S4(B2)}, s{sT0} offen offset:64
    s_cmp_ge_u32 s{sHas}, 28
    s_cbranch_scc1 L_no_g1
    s_and_b32 s{sT0}, s{sJ}, 1
    s_lshl_b32 s{sT0}, s{sT0}, 6
    s_lshl_b32 s{sT1}, s{sFb}, 7
    s_add_u32 s{sT0}, s{sT0}, s{sT1}
    v_lshrrev_b32 v{GA+7}, 5, v0
    v_lshlrev_b32 v{GA+7}, 3, v{GA+7}""")
    for i in range(4):
        a(f"buffer_load_dwordx2 {vr(GA+8+2*i,2)}, v{GA+7}, {S4(B1)}, s{sT0} offen offset:{16*i}")
        vq.add("b1")
    for t in (2, 3):
        w1_at(t)
    for r in range(0, 64, 2):
        a(f"v_mov_b64 {vr(ACC+r,2)}, 0")
    lds_wait(gPh, gT, 4, sleep=0)
    for t in range(8, 14):
        w1_at(t)
    vq.wait("b1")
    E = a.new("bi")
    labels = [a.new("bij") for _ in range(4)]
    for j in range(1, 4):
        a(f"s_cmp_eq_u32 s{sJ}, {j}\ns_cbranch_scc1 {labels[j]}")
    for j in range(4):
        a.label(labels[j])
        for i in range(8):
            a(f"v_lshlrev_b32 v{ACC+16*j+2*i}, 16, v{GA+8+i}\nv_and_b32 v{ACC+16*j+2*i+1}, 0xffff0000, v{GA+8+i}")
        if j < 3:
            a(f"s_branch {E}")
    a.label(E)
    a(f"""s_add_u32 s{sW}, s{sW}, {14*16*3584}
    s_lshl_b32 s{sAct}, s{sJ}, 19
    s_lshl_b32 s{sT0}, s{sDb}, 10
    s_add_u32 s{sAct}, s{sAct}, s{sT0}
    s_add_u32 s{sAct}, s{sAct}, {HT}
    s_lshr_b32 s{sT3}, s{sDb}, 1
    s_lshl_b32 s{sT3}, s{sT3}, 14
    s_lshl_b32 s{sT0}, s{sJ}, 12
    s_add_u32 s{sT3}, s{sT3}, s{sT0}
    s_add_u32 s{sC0+4}, s{sT3}, {HF}
    v_lshlrev_b32 v{gPoll}, 6, v0""")
    glb_wait(gPoll, gT, f"s{sC0+4}", sleep=1)
    stamp(4)
    vq.drain()
    a("s_setprio 0")
    D = OPT["D"]

    def act_load(t, vbase, step):
        r = ACT + 8 * (t % D)
        a(f"""buffer_load_dwordx4 {vr(r,4)}, v{vbase}, {S4(WS)}, s{sAct} offen sc1
        buffer_load_dwordx4 {vr(r+4,4)}, v{vbase}, {S4(WS)}, s{sAct} offen offset:{step} sc1
        s_add_u32 s{sAct}, s{sAct}, 16384""")
        vq.add(("a", t)); vq.add(("a", t))
    for t in range(D):
        act_load(t, gAct, 512)
    tr_reads(WFR, gTrA, slot1(0) * 2048, 512)
    for t in range(32):
        vq.wait(("a", t), ("w", t + 1))
        if t + 1 < 32:
            tr_reads(WFR + 8 * ((t + 1) % 2), gTrA, slot1(t + 1) * 2048, 512)
            a("s_waitcnt lgkmcnt(4)")
        else:
            a("s_waitcnt lgkmcnt(0)")
        w, x = WFR + 8 * (t % 2), ACT + 8 * (t % D)
        for b in range(2):
            for aa in range(2):
                mfma32(ACC + 16 * (aa + 2 * b), w + 4 * aa, x + 4 * b)
        if t + D < 32:
            act_load(t + D, gAct, 512)
        if t < 18:
            dma_step(vq, ("w", t + 14), W1, gD1, sW, slot1(t), 16 * 3584)
        elif t < 26:
            dma_step(vq, ("w2", t - 18), W2, gD2, sW2, t - 18, 16 * 4096)
        if t % OPT["svc"] == OPT["svc"] - 1 and t < 31:
            svc()
    a("s_setprio 2\ns_nop 10")
    reduce4(16384, 5, service=True)
    set_phase(6)
    cg = 2.0 * math.sqrt(2.0 / math.pi) * math.log2(math.e)
    a(f"""s_mov_b32 s{sC0}, {hex(f2u(-cg*0.044715))}
    v_mov_b32 v{ACT+32}, {hex(f2u(-cg))}""")
    for r in range(0, 16, 2):
        a(f"v_pk_mul_f32 {vr(ACT+r,2)}, {vr(RES+r,2)}, {vr(RES+r,2)}")
    for r in range(0, 16, 2):
        a(f"v_pk_fma_f32 {vr(ACT+r,2)}, {vr(ACT+r,2)}, {sr(sC0,2)}, {vr(ACT+32,2)} op_sel_hi:[1,0,0]")
    for r in range(0, 16, 2):
        a(f"v_pk_mul_f32 {vr(ACT+r,2)}, {vr(ACT+r,2)}, {vr(RES+r,2)}")
    for r in range(16):
        a(f"v_exp_f32 v{ACT+r}, v{ACT+r}")
    for r in range(0, 16, 2):
        a(f"v_pk_add_f32 {vr(ACT+r,2)}, {vr(ACT+r,2)}, 1.0 op_sel_hi:[1,0]")
    for r in range(16):
        a(f"v_rcp_f32 v{ACT+r}, v{ACT+r}")
    a(f"""s_lshl_b32 s{sT0}, s{sFb}, 1
    s_and_b32 s{sT1}, s{sJ}, 1
    s_add_u32 s{sT0}, s{sT0}, s{sT1}
    s_lshl_b32 s{sT0}, s{sT0}, 4
    s_add_u32 s{sT0}, s{sT0}, s{sDb}
    s_lshl_b32 s{sT0}, s{sT0}, 1
    s_lshr_b32 s{sT1}, s{sJ}, 1
    s_add_u32 s{sT0}, s{sT0}, s{sT1}
    s_lshl_b32 s{sT0}, s{sT0}, 10
    s_add_u32 s{sT0}, s{sT0}, {UU}
    s_add_u32 s{sT1}, s{sT0}, 16384""")
    for r in range(0, 16, 2):
        a(f"v_pk_mul_f32 {vr(ACT+r,2)}, {vr(ACT+r,2)}, {vr(RES+r,2)}")
    for i in range(8):
        a(f"v_cvt_pk_bf16_f32 v{RES+i}, v{ACT+2*i}, v{ACT+2*i+1}")
    a(f"""buffer_store_dwordx4 {vr(RES,4)}, v{gL16}, {S4(WS)}, s{sT0} offen sc1
    buffer_store_dwordx4 {vr(RES+4,4)}, v{gL16}, {S4(WS)}, s{sT1} offen sc1""")
    vq.add("u"); vq.add("u")
    lds_wait(gPh, gT, 6, sleep=0)
    for t in range(8, 14):
        dma_step(vq, ("w2", t), W2, gD2, sW2, t, 16 * 4096)
    a(f"""s_mul_i32 s{sT0}, s{sDb}, 28
    s_add_u32 s{sT0}, s{sT0}, s{sFb}
    s_lshl_b32 s{sT0}, s{sT0}, 2
    s_add_u32 s{sT0}, s{sT0}, s{sJ}
    s_lshl_b32 s{sT0}, s{sT0}, 6
    s_add_u32 s{sT0}, s{sT0}, {UF}""")
    vq.wait("u")
    flag_store(gZero, gTagV, f"s{sT0}")
    stamp(5)
    a("s_branch L_g2")
    a.label("L_no_g1")
    a("s_setprio 2")
    lds_wait(gPh, gT, 4, sleep=0)
    for t in range(14):
        dma_step(vq, ("w2", t), W2, gD2, sW2, t, 16 * 4096)
    a.label("L_g2")
    a(f"""s_lshl_b32 s{sT0}, s{sCb}, 2
    s_add_u32 s{sT0}, s{sT0}, s{sJ}
    s_mul_i32 s{sT0}, s{sT0}, {28*64}
    s_add_u32 s{sC0+4}, s{sT0}, {UF}
    v_min_u32 v{gPoll}, 27, v0
    v_lshlrev_b32 v{gPoll}, 6, v{gPoll}
    s_mul_i32 s{sAct}, s{sJ}, {28*16384}
    s_lshl_b32 s{sT0}, s{sCb}, 11
    s_add_u32 s{sAct}, s{sAct}, s{sT0}
    s_add_u32 s{sAct}, s{sAct}, {UU}""")
    glb_wait(gPoll, gT, f"s{sC0+4}", service=True, sleep=2)
    stamp(6)
    vq.drain()
    for t in range(D):
        act_load(t, gL16, 1024)
    a(f"""s_cmp_eq_u32 s{sJ}, 0
    s_cselect_b32 s{sT0}, 0xffff0000, 0
    v_lshlrev_b32 v{gAdd}, 16, v{gAdd}
    v_lshlrev_b32 v{gAdd+1}, 16, v{gAdd+1}
    v_and_b32 v{gAdd}, s{sT0}, v{gAdd}
    v_and_b32 v{gAdd+1}, s{sT0}, v{gAdd+1}
    v_mul_f32 v{gAdd}, v{gAdd}, v{gOm}
    v_mul_f32 v{gAdd+1}, v{gAdd+1}, v{gOm+1}
    s_setprio 0""")
    tr_reads(WFR, gTrB, 0, 1024)
    for t in range(28):
        vq.wait(("a", t), ("w2", t + 1))
        if t + 1 < 28:
            tr_reads(WFR + 8 * ((t + 1) % 2), gTrB, ((t + 1) % 14) * 2048, 1024)
            a("s_waitcnt lgkmcnt(4)")
        else:
            a("s_waitcnt lgkmcnt(0)")
        w, x = WFR + 8 * (t % 2), ACT + 8 * (t % D)
        for b in range(2):
            for aa in range(2):
                mfma32(ACC + 16 * (aa + 2 * b), x + 4 * aa, w + 4 * b, t == 0)
        if t + D < 28:
            act_load(t + D, gL16, 1024)
        if t < 14:
            dma_step(vq, ("w2", t + 14), W2, gD2, sW2, t, 16 * 4096)
        elif t < 22:
            dma_step(vq, ("wo", t - 14), WO, gDq, sWo, t - 14, 16384)
        if t % OPT["svc"] == OPT["svc"] - 1 and t < 27:
            svc()
    sO = sAct
    a(f"""s_setprio 2
    s_lshl_b32 s{sO}, s{sRb}, 17
    s_lshl_b32 s{sT0}, s{sJ}, 14
    s_add_u32 s{sO}, s{sO}, s{sT0}
    s_add_u32 s{sO}, s{sO}, {OO}
    s_nop 7""")
    for b in range(2):
        for r in range(0, 32, 2):
            reg = ACC + 32 * b + r
            a(f"v_pk_fma_f32 {vr(reg,2)}, {vr(reg,2)}, {vr(gOm,2)}, {vr(gAdd,2)} op_sel:[0,{b},{b}] op_sel_hi:[1,{b},{b}]")
    def o_phase(b, heads):
        o_poll([b * 65536 + i * 2048 for i in heads], ACT, sO)
        a("s_setprio 0")
        tr_reads(WFR, gTrB, heads[0] * 2048, 1024)
        for n, i in enumerate(heads):
            if n + 1 < len(heads):
                tr_reads(WFR + 8 * ((n + 1) % 2), gTrB, heads[n + 1] * 2048, 1024)
                a("s_waitcnt lgkmcnt(4)")
            else:
                a("s_waitcnt lgkmcnt(0)")
            for aa in range(2):
                mfma32(ACC + 16 * (aa + 2 * b), WFR + 8 * (n % 2) + 4 * aa, ACT + 8 * n + 2)
        a("s_setprio 2")
    o_phase(0, list(range(8)))
    o_phase(1, [0, 1, 4, 5])
    o_phase(1, [2, 6])
    a("s_nop 10")
    reduce4(16384, 7, service=True)
    a(f"""s_lshr_b32 s{sT1}, s{sJ}, 1
    s_lshl_b32 s{sT0}, s{sRb}, 1
    s_add_u32 s{sT0}, s{sT0}, s{sT1}
    s_lshl_b32 s{sW}, s{sT0}, 15
    s_lshl_b32 s{sT0}, s{sCb}, 7
    s_add_u32 s{sW}, s{sW}, s{sT0}
    s_and_b32 s{sT0}, s{sJ}, 1
    s_lshl_b32 s{sT0}, s{sT0}, 6
    s_add_u32 s{sW}, s{sW}, s{sT0}
    v_and_b32 v{gPoll}, 31, v0
    v_lshlrev_b32 v{gPoll}, 10, v{gPoll}
    v_lshrrev_b32 v{gT}, 5, v0
    v_lshl_add_u32 v{gPoll}, v{gT}, 4, v{gPoll}
    s_cmp_lt_u32 s{sJ}, 2
    s_cbranch_scc1 L_epi""")
    a(f"""v_subrev_u32 v{gD1}, s{sRing}, v{gTrB}
    v_xor_b32 v{gD1}, s{sT0}, v{gD1}
    v_add_u32 v{gD1+1}, {2*RING}, v{gD1}
    s_lshl_b32 s{sO}, s{sRb}, 17
    s_add_u32 s{sO}, s{sO}, {OO+65536}""")
    for c in range(8):
        off = ((c // 2) % 2) * RING + (4 * (c % 2) + 3) * 2048
        for q in range(2):
            a(f"ds_read_b64_tr_b16 {vr(ACC+4*c+2*q,2)}, v{gD1+c//4} offset:{off+q*1024}")
        if c == 3:
            a("s_waitcnt lgkmcnt(0)")
    o_poll([(4 * c + 3) * 2048 for c in range(8)], ACT, sO)
    a("s_waitcnt lgkmcnt(0)")
    for c in range(8):
        mfma32(RES, ACC + 4 * c, ACT + 8 * c + 2)
    a("s_nop 11")
    a.label("L_epi")
    for i in range(8):
        a(f"v_cvt_pk_bf16_f32 v{RES+i}, v{RES+2*i}, v{RES+2*i+1}")
    a(f"""s_nop 1
    v_permlane32_swap_b32 v{RES}, v{RES+2}
    v_permlane32_swap_b32 v{RES+1}, v{RES+3}
    v_permlane32_swap_b32 v{RES+4}, v{RES+6}
    v_permlane32_swap_b32 v{RES+5}, v{RES+7}
    buffer_store_dwordx4 {vr(RES,4)}, v{gPoll}, {S4(OUT)}, s{sW} offen
    buffer_store_dwordx4 {vr(RES+4,4)}, v{gPoll}, {S4(OUT)}, s{sW} offen offset:32""")
    a.label("L_duty_loop")
    a(f"""s_cmp_ge_u32 s{sFin}, 8
    s_cbranch_scc1 L_duty_done
    s_call_b64 {sr(sRet,2)}, L_service
    s_sub_u32 s{sBud}, s{sBud}, 1
    s_cbranch_scc1 L_bail
    s_sleep 1
    s_branch L_duty_loop""")
    a.label("L_duty_done")
    a(f"""s_cmp_lg_u32 s2, 0
    s_cbranch_scc1 L_gemm_end
    s_cmp_lg_u32 s{sJ}, 1
    s_cbranch_scc1 L_gemm_end""")
    flag_store(gZero, gTagV, "0")
    a.label("L_gemm_end")
    stamp(7)
    dump_stamps()
    a.label("L_bail")
    a.label("L_end")
    a("s_endpgm")
    a.label("L_service")
    a(f"""ds_read_b32 v{TMP}, v{gTagA}
    s_getreg_b32 s{sC0+3}, hwreg(HW_REG_STATUS, 3, 2)
    s_setprio 2
    s_add_u32 s{sT0}, s{sFin}, 1
    s_waitcnt lgkmcnt(0)
    v_cmp_eq_u32 vcc, s{sT0}, v{TMP}
    s_cmp_eq_u64 vcc, -1
    s_cbranch_scc0 L_svc_ret""")
    o_offset(sFin, sC0 + 2, sT0)
    finalize(TMP, TMP + 16, TMP + 32, TMP + 36, gPr, gLr, gGf, gL16, None, sC0 + 2, True)
    a.label("L_fin_skip")
    a(f"""s_and_b32 s{sT0}, s{sFin}, 2
    s_lshl_b32 s{sT0}, s{sT0}, 2
    s_add_u32 s{sFin}, s{sFin}, 2
    s_or_b32 s{sFin}, s{sFin}, s{sT0}""")
    a.label("L_svc_ret")
    a(f"""s_cmp_lg_u32 s{sC0+3}, 0
    s_cbranch_scc1 L_svc_ret2
    s_setprio 0""")
    a.label("L_svc_ret2")
    a(f"s_setpc_b64 {sr(sRet,2)}")


entry()
attention()
gemm()
a.label("L_codeend")

errs = check(a.lines)
for e in errs:
    print(e, file=sys.stderr)

hdr = open("cdna_kernels/" + NAME + ".s.ref").read().split("; Override launch")[0]
out = hdr + f"""; @launch grid=(256,1,1) block=(512,1,1) lds={LDS_SIZE}
.amdgcn_target "amdgcn-amd-amdhsa--gfx950"
.text
.globl {NAME}_kernel
.p2align 8
.type {NAME}_kernel,@function
{NAME}_kernel:
""" + a.text() + f""".section .rodata,"a"
.p2align 6
.amdhsa_kernel {NAME}_kernel
  .amdhsa_next_free_vgpr 256
  .amdhsa_next_free_sgpr 102
  .amdhsa_accum_offset 256
  .amdhsa_group_segment_fixed_size 0
  .amdhsa_kernarg_size 112
  .amdhsa_user_sgpr_count 2
  .amdhsa_user_sgpr_kernarg_segment_ptr 1
  .amdhsa_system_sgpr_workgroup_id_x 1
.end_amdhsa_kernel
"""
open(sys.argv[1], "w").write(out)
print(f"wrote {sys.argv[1]}: {len(a.lines)} lines, {len(errs)} hazards")
```
